```python
import torch

def _softmax(x, axis=-1):
    return torch.softmax(x, dim=axis)
def _gelu(x):
    return torch.nn.functional.gelu(x, approximate="tanh")
def _silu(x):
    return torch.nn.functional.silu(x)
def _sigmoid(x):
    return torch.sigmoid(x)
def _layernorm(x, axis=-1, eps=1e-5):
    m = x.mean(dim=axis, keepdim=True)
    v = x.var(dim=axis, keepdim=True, unbiased=False)
    return (x - m) / torch.sqrt(v + eps)
def _scatter_add(tgt, idx, src, axis=0):
    return tgt.clone().index_add_(axis, idx, src)
def _segment_sum(src, seg, n):
    out = torch.zeros((n,) + src.shape[1:], dtype=src.dtype)
    return out.index_add_(0, seg, src)
def _pad(x, pw):
    flat = tuple(v for pair in reversed(pw) for v in pair)
    return torch.nn.functional.pad(x, flat)

kernel_name = 'recurrent_scan__sliding_block__glu_gated_bilinear__prompt'

def setup_inputs():

    _w = (lambda a: (lambda t: t.to(torch.bfloat16) if t.is_floating_point() else t)(torch.as_tensor(a)))
    def _A_setup():
        B, S, D = 1, 2048, 576
        return {
            "x": _w((lambda *s: torch.randn(*s, dtype=torch.bfloat16) * 0.05)(B, S, D)),
            "wqkv": _w((lambda *s: torch.randn(*s, dtype=torch.bfloat16) * 0.2)(D, 3 * D)),
            "wo": _w((lambda *s: torch.randn(*s, dtype=torch.bfloat16) * 0.2)(D, D)),
        }
    _A_in = _A_setup()

    def _B_setup():
        B, S, D, F = 1, 2048, 576, 4608
        return {
            "x": _w((lambda *s: torch.randn(*s, dtype=torch.bfloat16) * 0.05)(B, S, D)),
            "w_gate": _w((lambda *s: torch.randn(*s, dtype=torch.bfloat16) * 0.1)(D, F) * (D ** -0.5)),
            "w_up": _w((lambda *s: torch.randn(*s, dtype=torch.bfloat16) * 0.1)(D, F) * (D ** -0.5)),
            "w_down": _w((lambda *s: torch.randn(*s, dtype=torch.bfloat16) * 0.1)(F, D) * (F ** -0.5)),
        }
    _B_in = _B_setup()

    return {
        "A_x": _A_in["x"],
        "A_wqkv": _A_in["wqkv"],
        "A_wo": _A_in["wo"],
        "B_x": _B_in["x"],
        "B_w_gate": _B_in["w_gate"],
        "B_w_up": _B_in["w_up"],
        "B_w_down": _B_in["w_down"],
    }

def reference(A_x, A_wqkv, A_wo, B_x, B_w_gate, B_w_up, B_w_down):
    def _A_ref(x, wqkv, wo):
        B, S, D = x.shape
        H = 32; Dh = D // H; W = 256
        qkv = (lambda x, *d: x.permute(*d))((x @ wqkv).reshape(B, S, 3, H, Dh), 2, 0, 3, 1, 4)
        q, k, v = qkv[0], qkv[1], qkv[2]
        scores = torch.einsum("bhqd,bhkd->bhqk", q, k) * (Dh ** -0.5)
        idx = torch.arange(S)
        mask = (idx[:, None] - idx[None, :] >= 0) & (idx[:, None] - idx[None, :] < W)
        scores = torch.where(mask[None, None], scores, -1e9)
        p = _softmax(scores, axis=-1)
        o = torch.einsum("bhqk,bhkd->bhqd", p, v)
        return (lambda x, *d: x.permute(*d))(o, 0, 2, 1, 3).reshape(B, S, D) @ wo

    def _B_ref(x, w_gate, w_up, w_down):
        g = torch.einsum("bsd,df->bsf", x, w_gate)
        u = torch.einsum("bsd,df->bsf", x, w_up)
        h = g * u
        return torch.einsum("bsf,fd->bsd", h, w_down)

    x = A_x
    xn = _layernorm(x, axis=-1)
    s = _A_ref(xn, A_wqkv, A_wo)
    g = _silu(_B_ref(xn, B_w_gate, B_w_up, B_w_down))
    return x + s * g
```

```python
from fw import *
OFF_H, OFF_QK, OFF_VT, OFF_O, OFF_PART, OFF_WOF = 0, 0x1200000, 0x1680000, 0x18C0000, 0x1B00000, 0x2D00000
OFF_STAMP = 0x8000000
WS_BYTES = 0x10000000
SZ_X, SZ_WQKV, SZ_WO, SZ_WG, SZ_WD = 2048*576*2, 576*1728*2, 576*576*2, 576*4608*2, 4608*576*2
SZ_QK, SZ_VT, SZ_O = 64*144*512, 64*4*9216, 64*72*512
M16 = "v_mfma_f32_16x16x32_bf16"
M32 = "v_mfma_f32_32x32x16_bf16"
PX, PQKV, PWO, PWG, PWU, PWD, POUT, PDBG, PWS = 64, 66, 68, 72, 74, 76, 78, 80, 82
sW = 3
STAMP0 = 84

class Stamps:
    def __init__(self, k, on, vreg):
        self.k, self.on, self.n, self.v = k, on, 0, vreg
    def __call__(self, real=False):
        if not self.on: return
        k = self.k
        k.e(f"{'s_memrealtime' if real else 's_memtime'} s[100:101]")
        k.e("s_waitcnt lgkmcnt(0)")
        k.e(f"v_writelane_b32 v{self.v}, s100, {self.n}")
        self.n += 1
    def dump(self, srd, slot=0):
        if not self.on: return
        k = self.k
        k.e(f"s_lshl_b32 s100, s2, 2")
        k.e(f"s_add_u32 s100, s100, s{sW}")
        k.e(f"s_lshl_b32 s100, s100, 8")
        k.e(f"s_add_u32 s100, s100, {OFF_STAMP + slot*0x40000}")
        k.e(f"v_mbcnt_lo_u32_b32 v0, -1, 0")
        k.e(f"v_mbcnt_hi_u32_b32 v0, -1, v0")
        k.e(f"v_lshlrev_b32 v0, 2, v0")
        k.e(f"buffer_store_dword v{self.v}, v0, {sr(srd)}, s100 offen")

def load_kernargs(k):
    k.e("s_load_dwordx16 s[64:79], s[0:1], 0")
    k.e("s_load_dwordx4 s[80:83], s[0:1], 64")

def bitrev2(k, dst, src):
    k.e(f"v_bfrev_b32 v{dst}, v{src}")
    k.e(f"v_lshrrev_b32 v{dst}, 30, v{dst}")

def warm_code(k, name, SC, vtmp, vdst, sT, nshare=8, kb=64):
    e = k.e
    e(f"s_getpc_b64 s[{SC}:{SC+1}]")
    k.lab(f"L_{name}_pc")
    e(f"s_mov_b32 s{SC+2}, L_{name}_end-L_{name}_pc")
    e(f"s_mov_b32 s{SC+3}, 0x00020000")
    per = kb * 1024 // nshare
    e(f"s_bfe_u32 s{sT}, s2, {hex(((nshare.bit_length()-1) << 16) | 3)}")
    e(f"s_mul_i32 s{sT}, s{sT}, {per}")
    e(f"v_lshlrev_b32 v{vtmp}, 7, v0")
    e(f"v_cmp_gt_u32 vcc, {per}, v{vtmp}")
    e(f"v_cndmask_b32 v{vtmp}, -1, v{vtmp}, vcc")
    e(f"buffer_load_dword v{vdst}, v{vtmp}, {sr(SC)}, s{sT} offen", tag="warm")
```

```python
import re

REG = re.compile(r"^(-|abs\()?([vas])(?:(\d+)|\[(\d+):(\d+)\])\)?$")

def regs_of(tok):
    tok = tok.strip()
    if tok in ("vcc", "exec", "m0", "scc"):
        return {(tok, 0)}
    if tok in ("vcc_lo", "vcc_hi"): return {("vcc", 0)}
    if tok in ("exec_lo", "exec_hi"): return {("exec", 0)}
    m = REG.match(tok)
    if not m: return set()
    k = m.group(2)
    if m.group(3) is not None:
        return {(k, int(m.group(3)))}
    return {(k, i) for i in range(int(m.group(4)), int(m.group(5)) + 1)}

def split_ops(s):
    out, depth, cur = [], 0, ""
    for ch in s:
        if ch in "[(": depth += 1
        if ch in "])": depth -= 1
        if ch == "," and depth == 0:
            out.append(cur.strip()); cur = ""
        else: cur += ch
    if cur.strip(): out.append(cur.strip())
    return out

TRANS = ("v_exp_f32", "v_log_f32", "v_rcp_f32", "v_rsq_f32", "v_sqrt_f32", "v_sin_f32", "v_cos_f32")

class Ins:
    __slots__ = ("text", "op", "kind", "dst", "src", "srcC", "srcAB", "passes", "states", "wide_store_data", "lds_dma")
    def __init__(self, text):
        self.text = text
        t = text.split(";")[0].strip()
        parts = t.split(None, 1)
        op = parts[0]; self.op = op
        rest = parts[1] if len(parts) > 1 else ""
        ops = split_ops(rest)
        mods = ""
        if ops:
            sp = ops[-1].split(None, 1)
            ops[-1] = sp[0]
            mods = sp[1] if len(sp) > 1 else ""
        self.dst, self.src, self.srcC, self.srcAB = set(), set(), set(), set()
        self.passes = 0; self.states = 1; self.wide_store_data = set(); self.lds_dma = False
        R = [regs_of(o) for o in ops]
        if op.startswith("v_mfma"):
            self.kind = "mfma"; self.dst = R[0]; self.srcAB = R[1] | R[2]; self.srcC = R[3]
            self.src = self.srcAB | self.srcC
            self.passes = 8 if "32x32x16" in op else 4
        elif op.startswith("v_"):
            self.kind = "valu"
            self.dst = set(R[0]); self.src = set().union(*R[1:]) if len(R) > 1 else set()
            if op.startswith(("v_fmac", "v_dot2c", "v_pk_fmac")): self.src |= R[0]
            if op.startswith("v_permlane") and "swap" in op:
                self.dst = R[0] | R[1]; self.src = R[0] | R[1]
            if op.startswith(("v_add_co", "v_sub_co", "v_addc_co", "v_subb_co")):
                self.dst |= R[1]; self.src = set().union(*R[2:])
            if op.startswith("v_cmpx"): self.dst |= {("exec", 0)}
            if op.startswith("v_cndmask") and len(ops) == 3: self.src |= {("vcc", 0)}
        elif op.startswith("ds_read") or op.startswith("ds_bpermute") or op.startswith("ds_swizzle"):
            self.kind = "ds"; self.dst = R[0]; self.src = set().union(*R[1:])
        elif op.startswith("ds_"):
            self.kind = "ds"; self.src = set().union(*R)
        elif op.startswith(("buffer_load", "global_load")):
            self.kind = "vmem"
            if re.search(r"\blds\b", mods) or "_lds_" in op:
                self.lds_dma = True; self.src = set().union(*R) | {("m0", 0)}
            else:
                self.dst = R[0]; self.src = set().union(*R[1:])
        elif op.startswith(("buffer_store", "global_store", "buffer_atomic", "global_atomic")):
            self.kind = "vmem"; self.src = set().union(*R)
            if op.startswith("buffer_store") and op.endswith(("x3", "x4")): self.wide_store_data = R[0]
            if op.startswith("global_store") and op.endswith(("x3", "x4")): self.wide_store_data = R[1]
            if "atomic" in op and "sc0" in mods: self.dst = R[0]
        elif op.startswith(("buffer_wbl2", "buffer_inv")):
            self.kind = "vmem"
        elif op == "s_nop":
            self.kind = "salu"; self.states = int(ops[0], 0) + 1
        elif op.startswith("s_"):
            self.kind = "salu"
            if op.startswith(("s_cmp", "s_waitcnt", "s_barrier", "s_branch", "s_cbranch", "s_endpgm", "s_setprio", "s_sleep", "s_bitcmp")):
                self.src = set().union(*R) if R else set()
            else:
                self.dst = R[0] if R else set(); self.src = set().union(*R[1:]) if len(R) > 1 else set()
                if "saveexec" in op: self.dst |= {("exec", 0)}
        else:
            raise ValueError("unknown instr " + text)

def vg(s): return {r for r in s if r[0] in "va"}
def sg(s): return {r for r in s if r[0] == "s" or r[0] == "vcc"}

def need(p, c):
    n = 0
    if p.kind == "valu":
        if c.kind == "mfma" and vg(p.dst) & c.src: n = max(n, 2)
        if c.kind == "mfma" and ("exec", 0) in p.dst: n = max(n, 4)
        if sg(p.dst):
            if c.kind == "vmem" and sg(p.dst) & c.src: n = max(n, 5)
            if c.kind == "valu" and sg(p.dst) & c.src:
                n = max(n, 4 if c.op.startswith(("v_readlane", "v_writelane")) else 2)
        if c.kind == "valu" and vg(p.dst) & c.src:
            if c.op.startswith(("v_readfirstlane", "v_readlane")): n = max(n, 1)
            if c.op.startswith("v_permlane") or "_dpp" in c.op or " row_" in c.text or "quad_perm" in c.text: n = max(n, 2)
            if p.op in TRANS and c.op not in TRANS: n = max(n, 1)
            if "sdwa" in p.op or "op_sel" in p.text: n = max(n, 1)
            if p.op.startswith("v_dot") and not (c.op == p.op and False): n = max(n, 0 if (c.op == p.op and not (vg(p.dst) & (c.src - c.dst))) else 3)
        if p.op.startswith("v_dot") and c.kind in ("vmem", "ds", "mfma") and vg(p.dst) & c.src: n = max(n, 3)
        if p.op.startswith("v_dot") and c.kind == "valu" and c.op != p.op and vg(p.dst) & c.dst: n = max(n, 3)
    if p.kind == "mfma":
        big = 12 if p.passes == 8 else 8
        if c.kind == "mfma":
            if p.dst & c.srcAB: n = max(n, big)
            if p.dst & c.srcC and not (p.dst == c.srcC and p.passes == c.passes): n = max(n, big - 2)
            if p.dst & c.dst and not (p.dst == c.dst and p.passes == c.passes): n = max(n, big - 2)
        elif c.kind in ("valu", "vmem", "ds"):
            if p.dst & (c.src | c.dst): n = max(n, big)
            if c.kind == "valu" and p.srcC & c.dst: n = max(n, 7 if p.passes == 8 else 3)
    if p.kind == "salu" and ("m0", 0) in p.dst and c.lds_dma: n = max(n, 1)
    if p.wide_store_data and p.wide_store_data & c.dst:
        n = max(n, 2 if c.kind in ("valu", "mfma") else 1)
    return n

class Kern:
    def __init__(self, name, vgpr=512, sgpr=102, accum=256):
        self.name = name; self.vgpr = vgpr; self.sgpr = sgpr; self.accum = accum
        self.l = []
        self.hist = []
        self.vm = []
        self.lg = []
        self.nops = 0
        self.nins = 0
    def raw(self, s): self.l.append(s)
    def comment(self, s): self.l.append("    ; " + s)
    def e(self, s, tag=None):
        i = Ins(s)
        dist = 0; req = 0
        for p in reversed(self.hist):
            req = max(req, need(p, i) - dist)
            dist += p.states
            if dist >= 14: break
        if req > 0:
            nop = Ins(f"s_nop {req-1}")
            self.l.append("    " + nop.text); self.hist.append(nop); self.nops += 1
        self.l.append("    " + s); self.hist.append(i); self.nins += 1
        if len(self.hist) > 64: self.hist = self.hist[-32:]
        if i.kind == "vmem": self.vm.append(tag)
        if i.kind == "ds": self.lg.append(tag)
    def lab(self, s):
        self.l.append(s + ":")
    def fence_hazards(self):
        self.e("s_nop 13")
    def _cnt(self, lst, tags):
        if not isinstance(tags, list): tags = [tags]
        last = -1
        for t in tags:
            idx = [i for i, x in enumerate(lst) if x == t]
            assert idx, f"tag {t} not found"
            last = max(last, idx[-1])
        return len(lst) - 1 - last
    def wait(self, vm=None, lg=None):
        parts = []
        if vm is not None:
            n = self._cnt(self.vm, vm)
            assert n <= 63 or True
            parts.append(f"vmcnt({min(n, 63)})")
        if lg is not None:
            n = self._cnt(self.lg, lg)
            parts.append(f"lgkmcnt({min(n, 15)})")
        self.e("s_waitcnt " + " ".join(parts))
    def srd(self, d, b, nbytes, off=0):
        if off:
            self.e(f"s_add_u32 s{d}, s{b}, {off}")
            self.e(f"s_addc_u32 s{d+1}, s{b+1}, 0")
        else:
            self.e(f"s_mov_b32 s{d}, s{b}")
            self.e(f"s_mov_b32 s{d+1}, s{b+1}")
        self.e(f"s_mov_b32 s{d+2}, {nbytes}")
        self.e(f"s_mov_b32 s{d+3}, 0x00020000")
    def text(self):
        h = [f".globl {self.name}", ".p2align 8", f".type {self.name},@function", f"{self.name}:"]
        return "\n".join(h + self.l) + "\n"
    def desc(self):
        return "\n".join([
            ".p2align 6",
            f".amdhsa_kernel {self.name}",
            f"  .amdhsa_next_free_vgpr {self.vgpr}",
            f"  .amdhsa_next_free_sgpr {self.sgpr}",
            f"  .amdhsa_accum_offset {self.accum}",
            "  .amdhsa_group_segment_fixed_size 0",
            "  .amdhsa_kernarg_size 80",
            "  .amdhsa_user_sgpr_count 2",
            "  .amdhsa_user_sgpr_kernarg_segment_ptr 1",
            "  .amdhsa_system_sgpr_workgroup_id_x 1",
            ".end_amdhsa_kernel"]) + "\n"

def module(header_lines, kernels):
    s = "\n".join(header_lines) + "\n"
    s += '.amdgcn_target "amdgcn-amd-amdhsa--gfx950"\n.text\n'
    for k in kernels: s += k.text()
    s += '.section .rodata,"a"\n'
    for k in kernels: s += k.desc()
    return s

def vr(b, n=4): return f"v[{b}:{b+n-1}]"
def ar(b, n=4): return f"a[{b}:{b+n-1}]"
def sr(b, n=4): return f"s[{b}:{b+n-1}]"
```

```python
from common import *

def phase1(k, name, st, LA=5, XD=3, st_aux="", abl=()):
    e = k.e
    XF = 112
    ACC = 48
    vL, vT0, vT1, vT2, vT3 = 38, 39, 40, 41, 42
    vTR = 1
    vTS = 13
    vF0, vF1, vS, vQ0, vQ1 = 19, 20, 21, 22, 23
    vSTH, vSTQ, vSTV0, vSTV1 = 24, 25, 26, 27
    vPK = 28
    vR, vC = 36, 38
    vN = 40
    vXR = 28
    vX0, vX1 = 32, 33
    vSum, vSq = ACC+32, ACC+40
    WF, NWF = 0, 8
    sRB, sJ = 4, 5
    SX, SG, SU, SQ, SWS, SC = 8, 12, 16, 20, 24, 28
    sW4k = 46; sXg = 48
    sPair, sSing, sA, sB = 52, 53, 54, 55
    sD, sD2 = 56, 57
    sH, sHs, sQA, sQB = 58, 59, 60, 61
    sMask, sOnes, sT = 62, 63, 47
    e(f"v_and_b32 v{vL}, 63, v0")
    e(f"v_lshrrev_b32 v{vT0}, 6, v0")
    e(f"v_readfirstlane_b32 s{sW}, v{vT0}")
    e(f"s_and_b32 s{sT}, s2, 1")
    e(f"s_lshl_b32 s{sT}, s{sT}, 3")
    e(f"s_bfe_u32 s{sRB}, s2, 0x30003")
    e(f"s_add_u32 s{sRB}, s{sRB}, s{sT}")
    e(f"s_bfe_u32 s{sT}, s2, 0x20001")
    e(f"s_lshl_b32 s{sT}, s{sT}, 2")
    e(f"s_lshr_b32 s{sJ}, s2, 6")
    e(f"s_add_u32 s{sJ}, s{sJ}, s{sT}")
    e(f"s_lshl_b32 s{sW4k}, s{sW}, 12")
    e(f"v_lshrrev_b32 v{vT0}, 3, v{vL}")
    e(f"v_and_b32 v{vT1}, 7, v{vL}")
    e(f"v_lshrrev_b32 v{vT2}, 4, v{vL}")
    e(f"v_xor_b32 v{vT2}, v{vT2}, v{vT1}")
    e(f"v_lshlrev_b32 v{vT2}, 4, v{vT2}")
    e(f"v_mul_u32_u24 v{vT3}, 1152, v{vT0}")
    e(f"v_add_u32 v{vX0}, v{vT3}, v{vT2}")
    e(f"v_xor_b32 v{vT2}, 64, v{vT2}")
    e(f"v_add_u32 v{vX1}, v{vT3}, v{vT2}")
    e(f"s_lshl_b32 s{sT}, s{sRB}, 2")
    e(f"s_add_u32 s{sT}, s{sT}, s{sW}")
    e(f"s_mul_i32 s{sXg}, s{sT}, {32*1152}")
    for g in range(1, 4): e(f"s_add_u32 s{sXg+g}, s{sXg}, {g*8*1152}")
    e("s_waitcnt lgkmcnt(0)")
    st()
    k.srd(SX, PX, SZ_X)
    def x_dma(i):
        out = []
        for g in range(4):
            f0 = lambda g=g: e(f"s_add_u32 m0, s{sW4k}, {i*16384 + g*1024 - 128*i}")
            f1 = lambda g=g: e(f"buffer_load_dwordx4 v{vX0 + (g & 1)}, {sr(SX)}, s{sXg+g} offen offset:{128*i} lds", tag=("x", i))
            out.append((f0, f1))
        return out
    if "noxt" not in abl:
        e(f"s_and_b32 s{sT}, s{sJ}, 3")
        e(f"s_lshl_b32 s{sD}, s{sRB}, 2")
        e(f"s_add_u32 s{sT}, s{sT}, s{sD}")
        e(f"s_mul_i32 s{sT}, s{sT}, 36864")
        e(f"v_lshlrev_b32 v{vT3}, 7, v0")
        e(f"buffer_load_dword v{ACC+2}, v{vT3}, {sr(SX)}, s{sT} offen", tag="warm")
        e(f"v_cmp_gt_u32 vcc, 32, v0")
        e(f"v_add_u32 v{vT3}, 32768, v{vT3}")
        e(f"v_cndmask_b32 v{vT3}, -1, v{vT3}, vcc")
        e(f"buffer_load_dword v{ACC+3}, v{vT3}, {sr(SX)}, s{sT} offen", tag="warm")
    for i in range(XD):
        for f0, f1 in x_dma(i): f0(); f1()
    st()
    k.srd(SG, PWG, SZ_WG); k.srd(SU, PWU, SZ_WG); k.srd(SQ, PQKV, SZ_WQKV); k.srd(SWS, PWS, WS_BYTES)
    e(f"s_mul_i32 s{sPair}, s{sJ}, 576")
    e(f"s_and_b32 s{sT}, s{sJ}, 1")
    e(f"s_cmp_eq_u32 s{sT}, 1")
    e(f"s_cselect_b32 s{sD}, 0, 512")
    e(f"s_add_u32 s{sSing}, s{sPair}, s{sD}")
    e(f"s_lshl_b32 s{sT}, s{sT}, 6")
    e(f"s_add_u32 s{sPair}, s{sPair}, s{sT}")
    if "nowarm" not in abl:
        e(f"v_and_b32 v{vT2}, 127, v0")
        e(f"s_and_b32 s{sT}, s{sRB}, 7")
        e(f"s_mul_i32 s{sT}, s{sT}, {72*9216}")
        e(f"s_add_u32 s{sT}, s{sT}, s{sPair}")
        e(f"v_mul_u32_u24 v{vT3}, 9216, v{vT2}")
        e(f"v_cmp_gt_u32 vcc, 72, v{vT2}")
        e(f"v_cndmask_b32 v{vT3}, -1, v{vT3}, vcc")
        e(f"s_cmp_lt_u32 s{sW}, 2")
        e(f"s_cbranch_scc0 L_{name}_wu")
        e(f"buffer_load_dword v{ACC}, v{vT3}, {sr(SG)}, s{sT} offen")
        e(f"s_branch L_{name}_wd")
        k.lab(f"L_{name}_wu")
        k.vm.pop()
        e(f"buffer_load_dword v{ACC}, v{vT3}, {sr(SU)}, s{sT} offen", tag="warm")
        k.lab(f"L_{name}_wd")
        warm_code(k, name, SC, vT3, ACC+1, sT)
    e(f"v_lshrrev_b32 v{vT2}, 3, v{vL}")
    e(f"v_and_b32 v{vT2}, 2, v{vT2}")
    e(f"v_xor_b32 v{vT2}, v{vT2}, v{vT1}")
    e(f"v_lshlrev_b32 v{vT2}, 4, v{vT2}")
    e(f"s_lshl_b32 s{sT}, s{sW}, 4")
    e(f"v_add_u32 v{vT3}, s{sT}, v{vT0}")
    e(f"v_mul_u32_u24 v{vF0}, 9216, v{vT3}")
    e(f"v_mul_u32_u24 v{vQ0}, 3456, v{vT3}")
    e(f"v_xor_b32 v{vT3}, 64, v{vT2}")
    e(f"v_add3_u32 v{vF1}, v{vF0}, v{vT3}, s{sT}")
    e(f"v_add3_u32 v{vQ1}, v{vQ0}, v{vT3}, s{sT}")
    e(f"v_subrev_u32 v{vF1}, s{sT}, v{vF1}")
    e(f"v_subrev_u32 v{vQ1}, s{sT}, v{vQ1}")
    e(f"v_add_u32 v{vF1}, {8*9216}, v{vF1}")
    e(f"v_add_u32 v{vQ1}, {8*3456}, v{vQ1}")
    e(f"v_add_u32 v{vF0}, v{vF0}, v{vT2}")
    e(f"v_add_u32 v{vQ0}, v{vQ0}, v{vT2}")
    e(f"v_bfe_u32 v{vT2}, v{vL}, 2, 2")
    e(f"v_lshrrev_b32 v{vT3}, 5, v{vL}")
    e(f"v_lshl_add_u32 v{vT2}, v{vT3}, 2, v{vT2}")
    e(f"v_bfe_u32 v{vT3}, v{vL}, 4, 1")
    e(f"v_lshl_add_u32 v{vT2}, v{vT3}, 3, v{vT2}")
    e(f"v_add_u32 v{vT2}, s{sT}, v{vT2}")
    e(f"v_mul_u32_u24 v{vS}, 9216, v{vT2}")
    e(f"v_lshlrev_b32 v{vT3}, 1, v{vT3}")
    e(f"v_and_b32 v{vT2}, 3, v{vL}")
    e(f"v_xor_b32 v{vT3}, v{vT3}, v{vT2}")
    e(f"v_lshl_add_u32 v{vS}, v{vT3}, 4, v{vS}")
    e(f"s_lshl_b32 s{sA}, s{sJ}, 7")
    e(f"s_cmp_le_u32 s{sJ}, 8")
    e(f"s_cselect_b32 s{sT}, 18, 7")
    e(f"s_add_u32 s{sB}, s{sJ}, s{sT}")
    e(f"s_lshl_b32 s{sB}, s{sB}, 7")
    e(f"s_cmp_ge_u32 s{sJ}, 11")
    e(f"s_cselect_b32 s{sB}, 0x40000000, s{sB}")
    e(f"v_and_b32 v{vT0}, 15, v{vL}")
    e(f"v_lshrrev_b32 v{vT1}, 4, v{vL}")
    e(f"v_lshrrev_b32 v{vT2}, 1, v{vT0}")
    e(f"v_xor_b32 v{vT2}, v{vT2}, v{vT1}")
    e(f"v_lshlrev_b32 v{vT2}, 4, v{vT2}")
    e(f"v_lshl_add_u32 v{vT2}, v{vT0}, 7, v{vT2}")
    e(f"v_add_u32 v{vXR}, s{sW4k}, v{vT2}")
    e(f"v_xor_b32 v{vXR+1}, 64, v{vXR}")
    e(f"v_bfe_u32 v{vT0}, v{vL}, 2, 2")
    e(f"v_and_b32 v{vT2}, 3, v{vL}")
    e(f"v_lshlrev_b32 v{vT2}, 3, v{vT2}")
    e(f"v_lshrrev_b32 v{vT3}, 5, v{vL}")
    e(f"v_lshl_add_u32 v{vT2}, v{vT3}, 12, v{vT2}")
    e(f"v_bfe_u32 v{vT3}, v{vL}, 4, 1")
    e(f"v_mul_u32_u24 v{vTS}, 288, v{vT3}")
    e(f"v_lshl_add_u32 v{vTS}, v{vT0}, 6, v{vTS}")
    e(f"v_add_u32 v{vTS}, v{vTS}, v{vT2}")
    e(f"v_xor_b32 v{vTS+3}, 32, v{vTS}")
    e(f"v_mul_u32_u24 v{vTR}, 1088, v{vT3}")
    e(f"v_lshl_add_u32 v{vTR}, v{vT0}, 7, v{vTR}")
    e(f"v_lshrrev_b32 v{vT0}, 1, v{vT0}")
    e(f"v_lshl_add_u32 v{vTR}, v{vT0}, 5, v{vTR}")
    e(f"v_add_u32 v{vTR}, v{vTR}, v{vT2}")
    for cs in range(1, 4): e(f"v_xor_b32 v{vTR+3*cs}, {32*cs}, v{vTR}")
    for b in [vTR+3*c for c in range(4)] + [vTS, vTS+3]:
        for g in (1, 2): e(f"v_add_u32 v{b+g}, {65536*g}, v{b}")
    e(f"s_lshl_b32 s{sT}, s{sW}, 11")
    e(f"v_lshl_add_u32 v{vSTH}, v{vL}, 4, s{sT}")
    bitrev2(k, vT0, vT1)
    e(f"v_and_b32 v{vT2}, 15, v{vL}")
    e(f"v_lshlrev_b32 v{vT2}, 4, v{vT2}")
    e(f"v_lshl_add_u32 v{vSTQ}, v{vT0}, 9, v{vT2}")
    e(f"v_mul_u32_u24 v{vSTV0}, 9216, v{vT3}")
    e(f"v_add_u32 v{vSTV0}, v{vSTV0}, v{vT2}")
    e(f"v_lshrrev_b32 v{vT0}, 5, v{vL}")
    e(f"v_lshl_add_u32 v{vSTV0}, v{vT0}, 8, v{vSTV0}")
    e(f"v_add_u32 v{vSTV1}, 18432, v{vSTV0}")
    e(f"s_mul_i32 s{sT}, s{sRB}, {144*8192}")
    e(f"s_lshl_b32 s{sH}, s{sPair}, 7")
    e(f"s_add_u32 s{sH}, s{sH}, s{sT}")
    e(f"s_lshl_b32 s{sHs}, s{sSing}, 7")
    e(f"s_add_u32 s{sHs}, s{sHs}, s{sT}")
    e(f"s_lshl_b32 s{sT}, s{sRB}, 2")
    e(f"s_add_u32 s{sT}, s{sT}, s{sW}")
    e(f"s_mul_i32 s{sD}, s{sT}, {144*512}")
    e(f"s_add_u32 s{sD}, s{sD}, {OFF_QK}")
    e(f"s_lshl_b32 s{sQA}, s{sA}, 5")
    e(f"s_add_u32 s{sQA}, s{sQA}, s{sD}")
    e(f"s_lshl_b32 s{sQB}, s{sB}, 5")
    e(f"s_add_u32 s{sQB}, s{sQB}, s{sD}")
    e(f"s_mul_i32 s{sD}, s{sT}, 36864")
    e(f"s_lshl_b32 s{sD2}, s{sJ}, 10")
    e(f"s_add_u32 s{sD}, s{sD}, s{sD2}")
    e(f"s_add_u32 s{sD}, s{sD}, {OFF_VT}")
    e(f"s_cmp_le_u32 s{sJ}, 8")
    e(f"s_cselect_b32 s{sQB}, s{sD}, s{sQB}")
    e(f"s_mov_b32 s{sMask}, 0xffff0000")
    e(f"s_mov_b32 s{sOnes}, 0x3f803f80")
    for i in range(16): e(f"v_mov_b32 v{vSum+i}, 0")
    st()

    def dma_slot(G):
        stg, n = divmod(G, 9)
        def mk(i, vo, srd, sbase, rowpitch, first):
            so = sD if rowpitch == 9216 else sD2
            def f0():
                if first: e(f"s_add_u32 s{so}, s{sbase}, {n*64*rowpitch + (128*stg if stg < 4 else 0)}")
                e(f"s_add_u32 m0, s{sW4k}, {n*16384 + i*1024}")
            def f1():
                e(f"buffer_load_dwordx4 v{vo}, {sr(srd)}, s{so} offen lds", tag=("w", G))
            return (f0, f1)
        if stg < 4:
            return [mk(0, vF0, SG, sPair, 9216, True), mk(1, vF1, SG, sPair, 9216, False),
                    mk(2, vF0, SU, sPair, 9216, False), mk(3, vF1, SU, sPair, 9216, False)]
        if stg == 4:
            return [mk(0, vS, SG, sSing, 9216, True), mk(1, vS, SU, sSing, 9216, False),
                    mk(2, vQ0, SQ, sA, 3456, True), mk(3, vQ1, SQ, sA, 3456, False)]
        return [mk(0, vQ0, SQ, sB, 3456, True), mk(1, vQ1, SQ, sB, 3456, False)]

    def xf(s, u): return XF + 8*s + 4*u
    def stats(i, dm):
        ops = []
        for c in range(2):
            for u in range(2):
                for r in range(4):
                    x = xf(2*i+c, u) + r
                    ops.append(f"v_dot2_f32_bf16 v{vSum+4*u+r}, v{x}, s{sOnes}, v{vSum+4*u+r}")
                    ops.append(f"v_dot2_f32_bf16 v{vSq+4*u+r}, v{x}, v{x}, v{vSq+4*u+r}")
        for q, o in enumerate(ops):
            if q % 8 == 0: dm[q // 8][0]()
            if q % 8 == 2: dm[q // 8][1]()
            e(o)
    wq = list(range(9))
    for i in range(9):
        if i in (4, 8):
            for c in range(2): e(f"v_add_u32 v{vXR+c}, 65536, v{vXR+c}")
        k.wait(vm=("x", i))
        for c in range(2):
            for u in range(2):
                e(f"ds_read_b128 {vr(xf(2*i+c, u))}, v{vXR+c} offset:{(i % 4)*16384 + 2048*u}", tag=("xr", i))
        if i in (0, 4): st()
        if i == 0:
            for f0, f1 in x_dma(XD): f0(); f1()
        else:
            k.wait(lg=("xr", i-1))
            stats(i-1, x_dma(i + XD) if i + XD < 9 else dma_slot(wq.pop(0)))
    k.wait(lg=("xr", 8))
    st()
    stats(8, dma_slot(wq.pop(0)))
    for b in (vSum, vSum+4, vSq, vSq+4):
        e(f"v_add_f32 v{b}, v{b}, v{b+1}")
        e(f"v_add_f32 v{b+2}, v{b+2}, v{b+3}")
    for b in (vSum, vSum+4, vSq, vSq+4): e(f"v_add_f32 v{b}, v{b}, v{b+2}")
    for sw in ("v_permlane16_swap_b32", "v_permlane32_swap_b32"):
        for b in (vSum, vSum+4, vSq, vSq+4): e(f"v_mov_b32 v{b+1}, v{b}")
        for b in (vSum, vSum+4, vSq, vSq+4): e(f"{sw} v{b}, v{b+1}")
        for b in (vSum, vSum+4, vSq, vSq+4): e(f"v_add_f32 v{b}, v{b}, v{b+1}")
    inv = "0x3ae38e39"
    seqs = []
    for u in range(2):
        m_, q_ = vSum+4*u, vSq+4*u
        seqs.append([
            f"v_mul_f32 v{m_}, {inv}, v{m_}", f"v_mul_f32 v{q_}, {inv}, v{q_}",
            f"v_fma_f32 v{q_}, -v{m_}, v{m_}, v{q_}", f"v_max_f32 v{q_}, 0, v{q_}",
            f"v_cvt_pk_bf16_f32 v{m_+1}, v{m_}, v{q_}", f"v_lshlrev_b32 v{m_}, 16, v{m_+1}",
            f"v_and_b32 v{q_}, s{sMask}, v{m_+1}", f"v_add_f32 v{q_}, 0x3727c5ac, v{q_}",
            f"v_cvt_pk_bf16_f32 v{q_}, v{q_}, v{q_}", f"v_and_b32 v{q_}, s{sMask}, v{q_}",
            f"v_sqrt_f32 v{q_}, v{q_}", f"v_cvt_pk_bf16_f32 v{q_}, v{q_}, v{q_}",
            f"v_and_b32 v{q_}, s{sMask}, v{q_}", f"v_rcp_f32 v{vR+u}, v{q_}",
            f"v_mul_f32 v{vC+u}, v{m_}, v{vR+u}", f"v_sub_f32 v{vC+u}, 0, v{vC+u}"])
    for a, b in zip(*seqs): e(a); e(b)
    def norm_ops(i):
        ops = []
        n = 0
        for (u, c) in ((0, 0), (0, 1), (1, 1), (1, 0)):
            for r in range(4):
                x = xf(2*i+c, u) + r
                t0, t1 = vN + 2*(n & 1), vN + 2*(n & 1) + 1; n += 1
                ops += [f"v_lshlrev_b32 v{t0}, 16, v{x}", f"v_and_b32 v{t1}, s{sMask}, v{x}",
                        f"v_fma_f32 v{t0}, v{t0}, v{vR+u}, v{vC+u}", f"v_fma_f32 v{t1}, v{t1}, v{vR+u}, v{vC+u}",
                        f"v_cvt_pk_bf16_f32 v{x}, v{t0}, v{t1}"]
        return [(lambda s=s: e(s)) for s in ops]
    nops0 = norm_ops(0)
    dm = dma_slot(wq.pop(0))
    for q, f in enumerate(nops0):
        if q % 20 == 0: dm[q // 20][0]()
        if q % 20 == 2: dm[q // 20][1]()
        f()
    st()

    def tiles_of(stg):
        if stg < 4: return [[(vTR+3*(2*P), 0), (vTR+3*(2*P), 2048), (vTR+3*(2*P+1), 0), (vTR+3*(2*P+1), 2048)] for P in range(2)]
        qk = lambda b: [(vTR+3*cs, b) for cs in range(4)]
        if stg == 4: return [[(vTS, 0), (vTS, 1024), (vTS+3, 0), (vTS+3, 1024)], qk(2048)]
        return [qk(0)]
    frags, seq = [], []
    for G in range(54):
        stg, n = divmod(G, 9)
        for P, tl in enumerate(tiles_of(stg)):
            for ct, (va, base) in enumerate(tl):
                f0 = len(frags)
                for c in range(2): frags.append((G, va + n // 4, (n % 4)*16384 + c*8192 + base))
                for (u, c) in ((0, 0), (0, 1), (1, 1), (1, 0)): seq.append((G, P, ct, u, c, f0 + c))
    first_of = {}
    for i, m in enumerate(seq): first_of.setdefault(m[0], i)
    def tr_read(h):
        fi, hf = divmod(h, 2)
        if fi >= len(frags): return
        G, va, off = frags[fi]
        a = WF + 4*(fi % NWF) + 2*hf
        e(f"ds_read_b64_tr_b16 a[{a}:{a+1}], v{va} offset:{off + 512*hf}", tag=("f", fi))
    def acc(P, ct, u): return ACC + 32*P + 8*ct + 4*u
    def epi(stg, P, vtype=False):
        ops = []
        ftype = stg < 4 or (stg == 4 and P == 0)
        if ftype:
            for ab in range(2):
                for u in range(2):
                    for r in range(4): ops.append(f"v_mul_f32 v{acc(P,2*ab+1,u)+r}, v{acc(P,2*ab,u)+r}, v{acc(P,2*ab+1,u)+r}")
                    for r in range(2): ops.append(f"v_cvt_pk_bf16_f32 v{vPK+4*u+2*ab+r}, v{acc(P,2*ab+1,u)+2*r}, v{acc(P,2*ab+1,u)+2*r+1}")
            if stg < 4: ops.append(f"s_add_u32 s{sT}, s{sH}, {(2*stg+P)*8192}")
            so = sT if stg < 4 else sHs
            for u in range(2): ops.append(f"buffer_store_dwordx4 {vr(vPK+4*u)}, v{vSTH}, {sr(SWS)}, s{so} offen offset:{1024*u} {st_aux}")
        else:
            so = sQA if stg == 4 else sQB
            sw = "v_permlane32_swap_b32" if vtype else "v_permlane16_swap_b32"
            for pr in range(2):
                for u in range(2):
                    a, b = acc(P, 2*pr, u), acc(P, 2*pr+1, u)
                    ops += [f"v_cvt_pk_bf16_f32 v{a}, v{a}, v{a+1}", f"v_cvt_pk_bf16_f32 v{a+1}, v{a+2}, v{a+3}",
                            f"v_cvt_pk_bf16_f32 v{a+2}, v{b}, v{b+1}", f"v_cvt_pk_bf16_f32 v{a+3}, v{b+2}, v{b+3}"]
                for u in range(2):
                    a = acc(P, 2*pr, u)
                    ops += [f"{sw} v{a}, v{a+2}", f"{sw} v{a+1}, v{a+3}"]
                for u in range(2):
                    a = acc(P, 2*pr, u)
                    if vtype: ops.append(f"buffer_store_dwordx4 {vr(a)}, v{vSTV0+u}, {sr(SWS)}, s{so} offen offset:{512*pr} {st_aux}")
                    else: ops.append(f"buffer_store_dwordx4 {vr(a)}, v{vSTQ}, {sr(SWS)}, s{so} offen offset:{2048*pr + 256*u} {st_aux}")
        if "nost" in abl: ops = [o for o in ops if not o.startswith("buffer_store")]
        return [(lambda s=s: e(s, tag="st")) for s in ops]
    fill = {i: [] for i in range(len(seq))}
    def spread(ops, lo, hi):
        n = hi - lo
        for q, f in enumerate(ops): fill[lo + q * n // len(ops)].append(f)
    barrier_at = {}
    LH = 2*LA
    for G in range(53):
        b = first_of[G+1] - LH - 1
        barrier_at[b] = G + 1
        if G >= 1 and G + 8 < 54 and "nodma" not in abl:
            for q, (f0, f1) in enumerate(dma_slot(G + 8)):
                step = 6 if G < 45 else 4
                fill[b + 1 + step*q].append(f0); fill[b + 2 + step*q].append(f1)
    pos = 1
    for G in wq:
        for f0, f1 in dma_slot(G):
            fill[pos].append(f0); fill[pos+1].append(f1); pos += 3
    assert pos < first_of[2] - LH - 1, pos
    for n in range(8): spread(norm_ops(n+1), first_of[n], first_of[n+1] - 2)
    for stg in range(5):
        lo = first_of[9*stg+8] + 16
        spread(epi(stg, 0), lo, lo + 16)
        if stg < 4:
            lo = first_of[9*stg+9]
            spread(epi(stg, 1), lo, lo + 16)
    k.wait(vm=("w", 0))
    e("s_barrier")
    for h in range(LH): tr_read(h)
    def run(lo, hi, vtype=False):
        for i in range(lo, hi):
            G, P, ct, u, c, fi = seq[i]
            n = G % 9
            if n == 0 and i == first_of[G] and not (G == 45 and not vtype):
                st()
                if G in (9, 36):
                    sv = st.n; st.n = 20 + (G == 36); st(real=True); st.n = sv
            if i % 4 == 0: k.wait(lg=("f", fi + 1))
            a = ar(WF + 4*(fi % NWF)); x = vr(xf(2*n + c, u)); d = vr(acc(P, ct, u))
            first = n == 0 and (i % 2 == 0)
            cin = "0" if first else d
            if vtype: e(f"{M16} {d}, {x}, {a}, {cin}")
            else: e(f"{M16} {d}, {a}, {x}, {cin}")
            if i in barrier_at:
                if "nodma" not in abl or barrier_at[i] < 9: k.wait(vm=("w", barrier_at[i]))
                if "nobar" not in abl: e("s_barrier")
            tr_read(i + LH)
            for f in fill[i]: f()
    s5 = first_of[45]
    run(0, s5)
    snap = (list(k.vm), list(k.lg), list(k.hist))
    e(f"s_cmp_ge_u32 s{sJ}, 11")
    e(f"s_cbranch_scc1 L_{name}_none")
    e(f"s_cmp_ge_u32 s{sJ}, 9")
    e(f"s_cbranch_scc1 L_{name}_qk")
    base_fill = {i: list(fill[i]) for i in range(s5, len(seq))}
    for vt in (True, False):
        if not vt:
            k.lab(f"L_{name}_qk")
            k.vm, k.lg, k.hist = list(snap[0]), list(snap[1]), list(snap[2])
        for i in range(s5, len(seq)): fill[i] = list(base_fill[i])
        spread(epi(4, 1), s5 + 2, s5 + 30)
        run(s5, len(seq), vtype=vt)
        for f in epi(5, 0, vtype=vt): f()
        e(f"s_branch L_{name}_fin")
    k.lab(f"L_{name}_none")
    k.vm, k.lg, k.hist = list(snap[0]), list(snap[1]), list(snap[2])
    for f in epi(4, 1): f()
    k.lab(f"L_{name}_fin")
    k.hist = []

def gen_k1(name="k1_kernel", stamps=False, **kw):
    k = Kern(name, vgpr=288, sgpr=102, accum=256)
    e = k.e
    st = Stamps(k, stamps, 47)
    e("s_cmp_ge_u32 s2, 256")
    e(f"s_cbranch_scc1 L_{name}_end")
    st(real=True); st()
    load_kernargs(k)
    phase1(k, name, st, **kw)
    st.n = 16
    st()
    if stamps: e("s_waitcnt vmcnt(0)")
    st(); st(real=True)
    st.dump(24)
    k.lab(f"L_{name}_end")
    e("s_endpgm")
    return k

if __name__ == "__main__":
    variants = {"base": {}, "noxt": {"abl": ("noxt",)}, "xd4": {"XD": 4}, "sc1": {"st_aux": "sc1"}, "nt": {"st_aux": "nt"}, "sc01": {"st_aux": "sc0 sc1"}}
    for vn, kw in variants.items():
        k = gen_k1(stamps=True, **kw)
        open(f"k1_{vn}.s", "w").write(module(["; @launch kernel=k1_kernel grid=(256,1,1) block=(256,1,1) lds=147456"], [k]))
        print(vn, "instrs", k.nins, "nops", k.nops)
```

```python
from common import *
CSC = "0x3eae1a2f"
import struct, math
def f2h(x): return hex(struct.unpack('<I', struct.pack('<f', x))[0])
CSC = f2h(18**-0.5*math.log2(math.e))
NEG = f2h(-1e30)

def phase2(k, name, st, SWS=24, st_aux="", ld_aux=""):
    e = k.e
    S = 112
    MD, MO = 80, 96
    OA = 64
    PF = 48
    QF = 32
    vL, vT0, vT1, vT2 = 1, 2, 3, 4
    vA, vB, vV0, vV1, vO, vO2 = 5, 6, 7, 8, 9, 10
    vM = 12
    vMC = 16
    vE = 18
    KF, VF = 0, 80
    sH, sT0, sP, sOo, sT, sQ, sK, sV, sC, sN = 4, 5, 6, 7, 47, 48, 49, 50, 51, 52
    sM = 32
    e(f"s_and_b32 s{sH}, s2, 31")
    e(f"s_lshr_b32 s{sT0}, s2, 5")
    e(f"s_lshl_b32 s{sT0}, s{sT0}, 2")
    e(f"s_add_u32 s{sT0}, s{sT0}, s{sW}")
    e(f"s_lshl_b32 s{sT0}, s{sT0}, 1")
    e(f"s_mul_i32 s{sP}, s{sH}, 9")
    e(f"s_and_b32 s{sOo}, s{sP}, 3")
    e(f"s_lshr_b32 s{sP}, s{sP}, 2")
    e(f"s_lshl_b32 s{sP}, s{sP}, 9")
    e(f"s_add_u32 s{sP}, s{sP}, {OFF_QK}")
    e(f"v_mbcnt_lo_u32_b32 v{vL}, -1, 0")
    e(f"v_mbcnt_hi_u32_b32 v{vL}, -1, v{vL}")
    e(f"v_lshlrev_b32 v{vA}, 4, v{vL}")
    e(f"v_and_b32 v{vB}, 0x1f0, v{vA}")
    for a in range(2):
        e(f"s_add_u32 s{sT}, s{sT0}, {a}")
        e(f"s_mul_i32 s{sQ}, s{sT}, 73728")
        e(f"s_add_u32 s{sQ}, s{sQ}, s{sP}")
        e(f"buffer_load_dwordx4 {vr(QF+8*a)}, v{vA}, {sr(SWS)}, s{sQ} offen {ld_aux}", tag="q")
        e(f"buffer_load_dwordx4 {vr(QF+8*a+4)}, v{vB}, {sr(SWS)}, s{sQ} offen offset:1024 {ld_aux}", tag="q")
    def ktile(kt):
        e(f"s_add_i32 s{sT}, s{sT0}, {kt-8}")
        e(f"s_max_i32 s{sT}, s{sT}, 0")
    for kt in range(10):
        ktile(kt)
        e(f"s_mul_i32 s{sK}, s{sT}, 73728")
        e(f"s_add_u32 s{sK}, s{sK}, s{sP}")
        e(f"s_add_u32 s{sK}, s{sK}, {72*512}")
        e(f"buffer_load_dwordx4 {ar(KF+8*kt)}, v{vA}, {sr(SWS)}, s{sK} offen {ld_aux}", tag=("k", kt))
        e(f"s_cmp_lt_i32 s{sT0}, {8-kt}")
        e(f"s_cselect_b32 s{sN}, 0xf149, 0")
        e(f"v_accvgpr_write_b32 a{KF+8*kt+4}, s{sN}")
        for r in range(1, 4): e(f"v_accvgpr_write_b32 a{KF+8*kt+4+r}, 0")
        e("s_mov_b32 exec_hi, 0")
        e(f"buffer_load_dwordx4 {ar(KF+8*kt+4)}, v{vA}, {sr(SWS)}, s{sK} offen offset:1024 {ld_aux}", tag=("k", kt))
        e("s_mov_b64 exec, -1")
    e(f"v_bfe_u32 v{vT0}, v{vL}, 2, 2")
    bitrev2(k, vT0, vT0)
    e(f"v_and_b32 v{vT1}, 0x13, v{vL}")
    e(f"v_lshl_add_u32 v{vT1}, v{vT0}, 2, v{vT1}")
    e(f"v_lshlrev_b32 v{vV0}, 4, v{vT1}")
    e(f"v_lshrrev_b32 v{vT2}, 5, v{vL}")
    e(f"v_mul_u32_u24 v{vT0}, 9216, v{vT2}")
    e(f"v_add_u32 v{vV0}, v{vV0}, v{vT0}")
    e(f"v_add_u32 v{vV1}, 18432, v{vV0}")
    e(f"s_mov_b32 s{sN}, 0x3f803f80")
    e(f"s_mul_i32 s{sC}, s{sH}, 288")
    e(f"s_add_u32 s{sC}, s{sC}, {OFF_VT}")
    e("s_mov_b32 s54, 0x3ffff")
    e("s_mov_b32 s55, 0x3ffff")
    for kt in range(10):
        for r in range(8): e(f"v_accvgpr_write_b32 a{VF+8*kt+r}, s{sN}")
        ktile(kt)
        e(f"s_mul_i32 s{sV}, s{sT}, 36864")
        e(f"s_add_u32 s{sV}, s{sV}, s{sC}")
        e("s_mov_b64 exec, s[54:55]")
        e(f"buffer_load_dwordx4 {ar(VF+8*kt)}, v{vV0}, {sr(SWS)}, s{sV} offen {ld_aux}", tag=("v", kt))
        e(f"buffer_load_dwordx4 {ar(VF+8*kt+4)}, v{vV1}, {sr(SWS)}, s{sV} offen {ld_aux}", tag=("v", kt))
        e("s_mov_b64 exec, -1")
    e(f"v_and_b32 v{vT0}, 31, v{vL}")
    e(f"v_lshlrev_b32 v{vT1}, 2, v{vT2}")
    e(f"v_sub_u32 v{vT0}, v{vT0}, v{vT1}")
    e(f"v_mov_b32 v{vT1}, {NEG}")
    for r in range(16):
        e(f"v_cmp_le_i32 vcc, {8*(r >> 2) + (r & 3)}, v{vT0}")
        e(f"v_cndmask_b32 v{MO+r}, 0, v{vT1}, vcc")
        e(f"v_sub_f32 v{MD+r}, v{vT1}, v{MO+r}")
    e(f"s_mov_b32 s{sC}, {CSC}")
    for d in range(4):
        e(f"s_cmp_le_u32 s{sOo}, {d}")
        e(f"s_cselect_b32 s{sM+2*d}, -1, 0")
        e(f"s_mov_b32 s{sM+2*d+1}, -1")
    m1 = [40, 42, 44, 54]
    for d in range(4):
        e(f"s_cmp_ge_u32 s{sOo}, {d}")
        e(f"s_cselect_b32 s{m1[d]}, -1, 0")
        e(f"s_mov_b32 s{m1[d]+1}, 0")
    e(f"v_mov_b32 v{vT0}, 0x3f80")
    st()
    k.wait(vm="q")
    for a in range(2):
        for d in range(4):
            e(f"v_cndmask_b32 v{QF+8*a+d}, 0, v{QF+8*a+d}, s[{sM+2*d}:{sM+2*d+1}]")
            if d == 0: e(f"v_cndmask_b32 v{QF+8*a+4}, v{vT0}, v{QF+8*a+4}, s[{m1[0]}:{m1[0]+1}]")
            else: e(f"v_cndmask_b32 v{QF+8*a+4+d}, 0, v{QF+8*a+4+d}, s[{m1[d]}:{m1[d]+1}]")
    st()
    def sreg(jj): return S + 16*jj
    def qk(a, jj, t):
        kt = a + jj
        d = vr(sreg(jj), 16)
        cin = d if t == 1 else (vr(MO, 16) if jj == 0 else vr(MD, 16) if jj == 8 else "0")
        e(f"{M32} {d}, {ar(KF+8*kt+4*t)}, {vr(QF+8*a+4*t)}, {cin}")
    def max_ops(jj):
        ops = []
        for r in range(8):
            m = vM + r % 4
            if jj == 0 and r < 4: ops.append(f"v_max_f32 v{m}, v{sreg(jj)+2*r}, v{sreg(jj)+2*r+1}")
            else: ops.append(f"v_max3_f32 v{m}, v{sreg(jj)+2*r}, v{sreg(jj)+2*r+1}, v{m}")
        return ops
    def max_fin():
        e(f"v_max3_f32 v{vM}, v{vM}, v{vM+1}, v{vM+2}")
        e(f"v_max_f32 v{vM}, v{vM}, v{vM+3}")
        e(f"v_mov_b32 v{vM+1}, v{vM}")
        e(f"v_permlane32_swap_b32 v{vM}, v{vM+1}")
        e(f"v_max_f32 v{vM}, v{vM}, v{vM+1}")
        e(f"v_mul_f32 v{vMC}, s{sC}, v{vM}")
    def exp_ops(jj):
        ops = []
        s0 = sreg(jj); p = PF + 8*(jj % 2)
        for r in range(0, 16, 2):
            ops += [f"v_fma_f32 v{s0+r}, v{s0+r}, s{sC}, -v{vMC}", f"v_fma_f32 v{s0+r+1}, v{s0+r+1}, s{sC}, -v{vMC}"]
            if r >= 2: ops.append(f"v_cvt_pk_bf16_f32 v{p+(r-2)//2}, v{s0+r-2}, v{s0+r-1}")
            ops += [f"v_exp_f32 v{s0+r}, v{s0+r}", f"v_exp_f32 v{s0+r+1}, v{s0+r+1}"]
        ops.append("s_nop 0")
        ops.append(f"v_cvt_pk_bf16_f32 v{p+7}, v{s0+14}, v{s0+15}")
        return ops
    def pv(a, jj, t):
        kt = a + jj
        d = vr(OA, 16)
        cin = "0" if (jj == 0 and t == 0) else d
        e(f"{M32} {d}, {ar(VF+8*kt+4*t)}, {vr(PF+8*(jj % 2)+4*t)}, {cin}")
    def o_fin(a):
        e(f"v_rcp_f32 v{vE}, v{OA+10}")
        for r in range(10): e(f"v_mul_f32 v{OA+r}, v{vE}, v{OA+r}")
        for r in range(5): e(f"v_cvt_pk_bf16_f32 v{OA+r}, v{OA+2*r}, v{OA+2*r+1}")
        e(f"s_add_u32 s{sT}, s{sT0}, {a}")
        e(f"s_mul_i32 s{sT}, s{sT}, 36864")
        e(f"s_add_u32 s{sT}, s{sT}, {OFF_O}")
        e(f"s_lshl_b32 s{sN}, s{sH}, 10")
        e(f"s_add_u32 s{sN}, s{sN}, s{sT}")
        e(f"buffer_store_dwordx4 {vr(OA)}, v{vA}, {sr(SWS)}, s{sN} offen {st_aux}", tag="ost")
        e(f"s_lshr_b32 s{sN}, s{sH}, 2")
        e(f"s_lshl_b32 s{sN}, s{sN}, 9")
        e(f"s_add_u32 s{sT}, s{sT}, s{sN}")
        e(f"s_and_b32 s{sN}, s{sH}, 3")
        e(f"s_lshl_b32 s{sN}, s{sN}, 2")
        e(f"s_add_u32 s{sT}, s{sT}, s{sN}")
        e(f"s_add_u32 s{sT}, s{sT}, {64*512}")
        e("s_mov_b32 exec_hi, 0")
        e(f"buffer_store_dword v{OA+4}, v{vA}, {sr(SWS)}, s{sT} offen {st_aux}", tag="ost")
        e("s_mov_b64 exec, -1")
    for jj in range(9):
        k.wait(vm=("k", jj))
        mo = max_ops(jj-2) if jj >= 2 else []
        qk(0, jj, 0)
        for o in mo[:4]: e(o)
        qk(0, jj, 1)
        for o in mo[4:]: e(o)
    for jj in (7, 8):
        for o in max_ops(jj): e(o)
    max_fin()
    st()
    k.wait(vm=("v", 9))
    for jj in range(9):
        ops = exp_ops(jj)
        if jj >= 3: ops = ops[:20] + max_ops(jj-3) + ops[20:]
        mf = []
        if jj >= 1: mf = [lambda: pv(0, jj-1, 0), lambda: pv(0, jj-1, 1), lambda: qk(1, jj-1, 0), lambda: qk(1, jj-1, 1)]
        n = len(ops)
        for q, o in enumerate(ops):
            if mf and q in (2, 2 + n//4, 2 + n//2, 2 + 3*n//4): mf.pop(0)()
            e(o)
    pv(0, 8, 0); pv(0, 8, 1); qk(1, 8, 0); qk(1, 8, 1)
    for jj in (6, 7):
        for o in max_ops(jj): e(o)
    o_fin(0)
    for o in max_ops(8): e(o)
    max_fin()
    st()
    for jj in range(9):
        ops = exp_ops(jj)
        mf = [lambda: pv(1, jj-1, 0), lambda: pv(1, jj-1, 1)] if jj >= 1 else []
        n = len(ops)
        for q, o in enumerate(ops):
            if mf and q in (2, 2 + n//2): mf.pop(0)()
            e(o)
    pv(1, 8, 0); pv(1, 8, 1)
    o_fin(1)
    st()
```

```python
from common import *

def decode_wg(k, sRB, sS, sCT, sT):
    e = k.e
    e(f"s_and_b32 s{sT}, s2, 1")
    e(f"s_lshl_b32 s{sT}, s{sT}, 3")
    e(f"s_bfe_u32 s{sRB}, s2, 0x30003")
    e(f"s_add_u32 s{sRB}, s{sRB}, s{sT}")
    e(f"s_bfe_u32 s{sS}, s2, 0x20001")
    e(f"s_lshr_b32 s{sCT}, s2, 6")

def phase3(k, name, st, SWS=24, LA=5, HD=8, st_aux="", ld_aux="", abl=()):
    e = k.e
    ACC = 64
    HF = 136
    vL, vT0, vT1, vT2 = 1, 2, 3, 4
    vD = 5
    vTR = 14
    vH = 17
    vP = 18
    WF, NWF = 0, 8
    SD = 32
    sRB, sS, sCT, sT = 4, 5, 6, 47
    sWb, sHb, sLb, sD, sHo, sPb = 48, 49, 50, 51, 52, 53
    decode_wg(k, sRB, sS, sCT, sT)
    k.srd(SD, PWD, SZ_WD)
    e(f"v_and_b32 v{vL}, 63, v0")
    e(f"s_mul_i32 s{sWb}, s{sS}, {1152*1152}")
    e(f"s_mul_i32 s{sT}, s{sW}, {32*1152}")
    e(f"s_add_u32 s{sWb}, s{sWb}, s{sT}")
    e(f"s_mul_i32 s{sT}, s{sCT}, 288")
    e(f"s_add_u32 s{sWb}, s{sWb}, s{sT}")
    e(f"s_mul_i32 s{sLb}, s{sW}, 9216")
    e(f"s_mul_i32 s{sHb}, s{sRB}, 144")
    e(f"s_mul_i32 s{sT}, s{sS}, 36")
    e(f"s_add_u32 s{sHb}, s{sHb}, s{sT}")
    e(f"s_lshl_b32 s{sHb}, s{sHb}, 13")
    e(f"s_lshl_b32 s{sT}, s{sW}, 11")
    e(f"s_add_u32 s{sHb}, s{sHb}, s{sT}")
    if OFF_H: e(f"s_add_u32 s{sHb}, s{sHb}, {OFF_H}")
    e(f"v_lshlrev_b32 v{vH}, 4, v{vL}")
    for i in range(9):
        e(f"v_add_u32 v{vT0}, {64*i}, v{vL}")
        e(f"v_mul_u32_u24 v{vT1}, 3641, v{vT0}")
        e(f"v_lshrrev_b32 v{vT1}, 16, v{vT1}")
        e(f"v_lshlrev_b32 v{vT0}, 4, v{vT0}")
        e(f"v_mul_u32_u24 v{vT1}, {1152-288}, v{vT1}")
        e(f"v_add_u32 v{vD+i}, v{vT0}, v{vT1}")
    def dma_slot(G):
        out = []
        for i in range(9):
            def f0(i=i):
                if i == 0: e(f"s_add_u32 s{sD}, s{sWb}, {G*128*1152}")
                e(f"s_add_u32 m0, s{sLb}, {(G % 4)*36864 + i*1024}")
            def f1(i=i): e(f"buffer_load_dwordx4 v{vD+i}, {sr(SD)}, s{sD} offen lds", tag=("wd", G))
            out.append((f0, f1))
        return out
    def hreg(ks, u): return HF + 8*(ks % HD) + 4*u
    def h_load(ks):
        def f0(): e(f"s_add_u32 s{sHo}, s{sHb}, {ks*8192}")
        fs = [f0]
        for u in range(2):
            fs.append(lambda u=u: e(f"buffer_load_dwordx4 {vr(hreg(ks, u))}, v{vH}, {sr(SWS)}, s{sHo} offen offset:{1024*u} {ld_aux}", tag=("h", ks)))
        return fs
    for f0, f1 in dma_slot(0): f0(); f1()
    for ks in range(4):
        for f in h_load(ks): f()
    for f0, f1 in dma_slot(1): f0(); f1()
    for ks in range(4, HD):
        for f in h_load(ks): f()
    e(f"v_lshrrev_b32 v{vT0}, 2, v{vL}")
    e(f"v_mul_u32_u24 v{vTR}, 288, v{vT0}")
    e(f"v_and_b32 v{vT0}, 3, v{vL}")
    e(f"v_lshl_add_u32 v{vTR}, v{vT0}, 3, v{vTR}")
    e(f"v_add_u32 v{vTR+1}, {7*9216}, v{vTR}")
    e(f"v_add_u32 v{vTR+2}, {14*9216}, v{vTR}")
    e(f"s_lshl_b32 s{sPb}, s{sRB}, 2")
    e(f"s_add_u32 s{sPb}, s{sPb}, s{sCT}")
    e(f"s_lshl_b32 s{sPb}, s{sPb}, 2")
    e(f"s_add_u32 s{sPb}, s{sPb}, s{sW}")
    e(f"s_lshl_b32 s{sPb}, s{sPb}, 2")
    e(f"s_add_u32 s{sPb}, s{sPb}, s{sS}")
    e(f"s_mul_i32 s{sPb}, s{sPb}, 18432")
    e(f"s_add_u32 s{sPb}, s{sPb}, {OFF_PART}")
    frags, seq = [], []
    for kp in range(18):
        for ct in range(9):
            f0 = len(frags)
            for c in range(2):
                ks = 2*kp + c
                slab = ((ks // 4) % 4)*4 + ks % 4
                frags.append((vTR + slab // 7, (slab % 7)*9216 + ct*32))
            for (u, c) in ((0, 0), (0, 1), (1, 1), (1, 0)): seq.append((kp, ct, u, c, f0 + c))
    def tr_read(h):
        fi, hf = divmod(h, 2)
        if fi >= len(frags): return
        va, off = frags[fi]
        a = WF + 4*(fi % NWF) + 2*hf
        e(f"ds_read_b64_tr_b16 a[{a}:{a+1}], v{va} offset:{off + 4608*hf}", tag=("f", fi))
    LH = 2*LA
    fill = {i: [] for i in range(len(seq))}
    barrier_at = {}
    pos = 1
    for f0, f1 in dma_slot(2):
        fill[pos].append(f0); fill[pos+1].append(f1); pos += 6
    for G in range(8):
        b = 72*(G+1) - LH - 1
        barrier_at[b] = G + 1
        if G + 3 < 9:
            for q, (f0, f1) in enumerate(dma_slot(G + 3)):
                fill[b + 1 + 7*q].append(f0); fill[b + 2 + 7*q].append(f1)
    for kp in range(18):
        for c in range(2):
            ks = 2*kp + c + HD
            if ks < 36:
                base = 36*(kp+1) + 4 + 16*c
                for q, f in enumerate(h_load(ks)): fill[base + 3*q].append(f)
    st()
    k.wait(vm=("wd", 0))
    e("s_barrier")
    for h in range(LH): tr_read(h)
    st()
    for i, (kp, ct, u, c, fi) in enumerate(seq):
        if i % 36 == 0: k.wait(vm=("h", 2*kp + 1))
        if i % 4 == 0: k.wait(lg=("f", fi + 1))
        d = vr(ACC + 8*ct + 4*u)
        cin = "0" if (kp == 0 and i % 2 == 0) else d
        e(f"{M16} {d}, {ar(WF + 4*(fi % NWF))}, {vr(hreg(2*kp + c, u))}, {cin}")
        if i in barrier_at:
            k.wait(vm=("wd", barrier_at[i]))
            e("s_barrier")
        tr_read(i + LH)
        for f in fill[i]: f()
        if kp == 17 and i % 4 == 3 and ct >= 2:
            for u2 in range(2): store_part(k, ACC, ct - 2, u2, vH, SWS, sPb, sT, st_aux)
    for ct in (7, 8):
        for u2 in range(2): store_part(k, ACC, ct, u2, vH, SWS, sPb, sT, st_aux)
    st()

def store_part(k, ACC, ct, u, vH, SWS, sPb, sT, st_aux):
    t = 2*ct + u
    if t % 4 == 0: k.e(f"s_add_u32 s{sT}, s{sPb}, {t*1024}")
    k.e(f"buffer_store_dwordx4 {vr(ACC + 4*t)}, v{vH}, {sr(SWS)}, s{sT} offen offset:{(t % 4)*1024} {st_aux}", tag="pst")
```

```python
from common import *
from p3 import decode_wg

def wof_load(k, SO, vA, vD, vT0, vT1, s0):
    e = k.e
    sF, sKS, sCTL, sT = s0, s0+1, s0+2, s0+3
    sJ = s0 + 4
    k.srd(SO, PWO, SZ_WO)
    e(f"s_lshl_b32 s{sF}, s2, 2")
    e(f"s_add_u32 s{sF}, s{sF}, s{sW}")
    e(f"s_mul_i32 s{sCTL}, s{sF}, 3641")
    e(f"s_lshr_b32 s{sCTL}, s{sCTL}, 16")
    e(f"s_mul_i32 s{sT}, s{sCTL}, 18")
    e(f"s_sub_u32 s{sKS}, s{sF}, s{sT}")
    e(f"v_mbcnt_lo_u32_b32 v{vT0}, -1, 0")
    e(f"v_mbcnt_hi_u32_b32 v{vT0}, -1, v{vT0}")
    e(f"v_and_b32 v{vA}, 15, v{vT0}")
    e(f"v_lshlrev_b32 v{vA}, 1, v{vA}")
    e(f"v_lshrrev_b32 v{vT0}, 4, v{vT0}")
    e(f"v_lshrrev_b32 v{vT1}, 1, v{vT0}")
    e(f"v_mul_u32_u24 v{vT1}, 18, v{vT1}")
    e(f"v_and_b32 v{vD}, 1, v{vT0}")
    e(f"v_lshl_add_u32 v{vT1}, v{vD}, 3, v{vT1}")
    e(f"v_mul_u32_u24 v{vT0}, 72, v{vT0}")
    e(f"s_cmp_ge_u32 s{sKS}, 16")
    e(f"s_cselect_b64 vcc, -1, 0")
    e(f"v_cndmask_b32 v{vT0}, v{vT1}, v{vT0}, vcc")
    e(f"v_mul_u32_u24 v{vT0}, 1152, v{vT0}")
    e(f"v_add_u32 v{vA}, v{vA}, v{vT0}")
    e(f"s_mul_i32 s{sT}, s{sKS}, {36*1152}")
    e(f"s_mul_i32 s{sJ}, s{sKS}, {288*1152}")
    e(f"s_sub_u32 s{sJ}, s{sJ}, {(288*16 - 16)*1152}")
    e(f"s_cmp_ge_u32 s{sKS}, 16")
    e(f"s_cselect_b32 s{sT}, s{sJ}, s{sT}")
    e(f"s_lshl_b32 s{sJ}, s{sCTL}, 5")
    e(f"s_add_u32 s{sT}, s{sT}, s{sJ}")
    e(f"s_cmp_ge_u32 s{sF}, 648")
    e(f"s_cselect_b32 s{sT}, 0x40000000, s{sT}")
    e(f"s_cmp_ge_u32 s{sKS}, 16")
    for j in range(8):
        e(f"s_cselect_b32 s{sJ+j}, {(18*(j >> 1) + (j & 1))*1152}, {j*1152}" if (18*(j >> 1) + (j & 1)) == j else f"s_mov_b32 s{sJ+j}, {j*1152}")
        if (18*(j >> 1) + (j & 1)) != j:
            e(f"s_cselect_b32 s{sJ+j}, {(18*(j >> 1) + (j & 1))*1152}, s{sJ+j}")
    for j in range(8): e(f"s_add_u32 s{sJ+j}, s{sJ+j}, s{sT}")
    for j in range(8):
        e(f"buffer_load_ushort v{vD + j//2 + 4*(j & 1)}, v{vA}, {sr(SO)}, s{sJ+j} offen", tag="wof")
    e(f"s_cmp_ge_u32 s{sF}, 648")
    e(f"s_cselect_b32 s{sT}, 0x40000000, {OFF_WOF}")
    e(f"s_lshl_b32 s{sF}, s{sF}, 10")
    e(f"s_add_u32 s{sF}, s{sF}, s{sT}")

def wof_store(k, SWS, vD, vT0, s0, st_aux=""):
    e = k.e
    e(f"v_mbcnt_lo_u32_b32 v{vT0}, -1, 0")
    e(f"v_mbcnt_hi_u32_b32 v{vT0}, -1, v{vT0}")
    e(f"v_lshlrev_b32 v{vT0}, 4, v{vT0}")
    for i in range(4): e(f"v_lshl_or_b32 v{vD+i}, v{vD+4+i}, 16, v{vD+i}")
    e(f"buffer_store_dwordx4 {vr(vD)}, v{vT0}, {sr(SWS)}, s{s0} offen {st_aux}", tag="wofst")

def phase4(k, name, st, SWS=24, ld_aux=""):
    e = k.e
    OF = 0
    WFv = 40
    PR = 144
    ACC = 12
    XR = 240
    vL, vA, vO, vX, vT0, vT1, vT2, vT3 = 1, 2, 3, 4, 5, 6, 7, 8
    SX, SOUT = 8, 12
    sRB, sWq, sCT, sT, sB, sB2, sMask = 4, 5, 6, 47, 48, 49, 50
    e(f"s_cmp_ge_u32 s{sW}, 3")
    e(f"s_cbranch_scc1 L_{name}_p4end")
    decode_wg(k, sRB, sWq, sCT, sT)
    k.srd(SX, PX, SZ_X); k.srd(SOUT, POUT, SZ_X)
    e(f"v_mbcnt_lo_u32_b32 v{vL}, -1, 0")
    e(f"v_mbcnt_hi_u32_b32 v{vL}, -1, v{vL}")
    e(f"v_lshlrev_b32 v{vA}, 4, v{vL}")
    e(f"v_and_b32 v{vT0}, 15, v{vL}")
    e(f"v_lshrrev_b32 v{vT1}, 4, v{vL}")
    e(f"v_lshlrev_b32 v{vO}, 4, v{vT0}")
    e(f"v_lshl_add_u32 v{vO}, v{vT1}, 9, v{vO}")
    e(f"v_mul_u32_u24 v{vX}, 1152, v{vT0}")
    e(f"v_lshl_add_u32 v{vX}, v{vT1}, 3, v{vX}")
    e(f"s_mul_i32 s{sB}, s{sCT}, 9")
    e(f"s_mul_i32 s{sT}, s{sW}, 3")
    e(f"s_add_u32 s{sB}, s{sB}, s{sT}")
    e(f"s_mul_i32 s{sB}, s{sB}, 18432")
    e(f"s_add_u32 s{sB}, s{sB}, {OFF_WOF}")
    e(f"s_lshl_b32 s{sB2}, s{sRB}, 2")
    e(f"s_add_u32 s{sB2}, s{sB2}, s{sWq}")
    e(f"s_mul_i32 s{sMask}, s{sB2}, {32*1152}")
    e(f"s_mul_i32 s{sB2}, s{sB2}, 36864")
    e(f"s_add_u32 s{sB2}, s{sB2}, {OFF_O}")
    sX = 51
    e(f"s_mul_i32 s{sT}, s{sCT}, 288")
    e(f"s_add_u32 s{sX}, s{sMask}, s{sT}")
    e(f"s_mul_i32 s{sT}, s{sW}, 96")
    e(f"s_add_u32 s{sX}, s{sX}, s{sT}")
    e(f"s_add_u32 s{sX+1}, s{sX}, {16*1152}")
    def wo_load(ks):
        for c3 in range(3):
            e(f"s_add_u32 s{sT}, s{sB}, {(c3*18 + ks)*1024}")
            e(f"buffer_load_dwordx4 {vr(WFv + 12*ks + 4*c3)}, v{vA}, {sr(SWS)}, s{sT} offen {ld_aux}", tag=("wo", ks))
    def o_load(ks):
        if ks % 2 == 0: e(f"s_add_u32 s53, s{sB2}, {ks*2048}")
        for u in range(2):
            e(f"buffer_load_dwordx4 {ar(OF + 8*ks + 4*u)}, v{vO}, {sr(SWS)}, s53 offen offset:{(ks % 2)*2048 + 256*u} {ld_aux}", tag=("o", ks))
    def mm(ks):
        k.wait(vm=[("wo", ks), ("o", ks)])
        for c3 in range(3):
            for u in range(2):
                d = vr(ACC + 8*c3 + 4*u)
                e(f"{M16} {d}, {vr(WFv + 12*ks + 4*c3)}, {ar(OF + 8*ks + 4*u)}, {'0' if ks == 0 else d}")
    D = 10
    for ks in range(D): wo_load(ks); o_load(ks)
    st()
    sP = 54
    e(f"s_lshl_b32 s{sP}, s{sRB}, 2")
    e(f"s_add_u32 s{sP}, s{sP}, s{sCT}")
    e(f"s_lshl_b32 s{sP}, s{sP}, 2")
    e(f"s_add_u32 s{sP}, s{sP}, s{sWq}")
    e(f"s_mul_i32 s{sP}, s{sP}, {4*18432}")
    e(f"s_mul_i32 s{sT}, s{sW}, 6144")
    e(f"s_add_u32 s{sP}, s{sP}, s{sT}")
    e(f"s_add_u32 s{sP}, s{sP}, {OFF_PART}")
    extra = []
    for t in range(6):
        for s_ in range(4):
            def f(t=t, s_=s_):
                e(f"s_add_u32 s55, s{sP}, {s_*18432 + t*1024}")
                e(f"buffer_load_dwordx4 {ar(PR + 16*t + 4*s_)}, v{vA}, {sr(SWS)}, s55 offen {ld_aux}", tag=("p", t))
            extra.append(f)
        def fx(t=t):
            e(f"buffer_load_dwordx2 {ar(XR + 2*t, 2)}, v{vX}, {sr(SX)}, s{sX + (t & 1)} offen offset:{32*(t >> 1)}", tag=("p", t))
        extra.append(fx)
    for ks in range(18):
        mm(ks)
        if ks + D < 18: wo_load(ks + D); o_load(ks + D)
        else:
            for _ in range(3): extra.pop(0)()
    assert not extra
    e(f"s_mov_b32 s{sMask}, 0xffff0000")
    st()
    T = 40
    for t in range(6):
        k.wait(vm=("p", t))
        b = T + 24*t
        for i in range(16): e(f"v_accvgpr_read_b32 v{b+i}, a{PR+16*t+i}")
        for i in range(2): e(f"v_accvgpr_read_b32 v{b+16+i}, a{XR+2*t+i}")
        for r in range(4): e(f"v_add_f32 v{b+r}, v{b+r}, v{b+4+r}")
        for r in range(4): e(f"v_add_f32 v{b+8+r}, v{b+8+r}, v{b+12+r}")
        for r in range(4): e(f"v_add_f32 v{b+r}, v{b+r}, v{b+8+r}")
        for r in range(4): e(f"v_mul_f32 v{b+4+r}, 0xbfb8aa3b, v{b+r}")
        for r in range(4): e(f"v_exp_f32 v{b+4+r}, v{b+4+r}")
        for r in range(4): e(f"v_mul_f32 v{b+r}, v{b+r}, v{ACC+4*t+r}")
        for r in range(4): e(f"v_add_f32 v{b+4+r}, 1.0, v{b+4+r}")
        for r in range(4): e(f"v_rcp_f32 v{b+4+r}, v{b+4+r}")
        for i in range(2):
            e(f"v_lshlrev_b32 v{b+8+2*i}, 16, v{b+16+i}")
            e(f"v_and_b32 v{b+9+2*i}, s{sMask}, v{b+16+i}")
        for r in range(4): e(f"v_fma_f32 v{b+r}, v{b+r}, v{b+4+r}, v{b+8+r}")
        for i in range(2): e(f"v_cvt_pk_bf16_f32 v{b+12+i}, v{b+2*i}, v{b+2*i+1}")
        e(f"buffer_store_dwordx2 {vr(b+12, 2)}, v{vX}, {sr(SOUT)}, s{sX + (t & 1)} offen offset:{32*(t >> 1)}")
    st()
    k.lab(f"L_{name}_p4end")
```

```python
import sys
from common import *
from p1 import phase1
from p2 import phase2
from p3 import phase3
from p4 import phase4, wof_load, wof_store

def head(k, name, st):
    k.e("s_cmp_ge_u32 s2, 256")
    k.e(f"s_cbranch_scc1 L_{name}_end")
    st(real=True); st()
    load_kernargs(k)
def tail(k, name, st, slot):
    st.n = 30
    st()
    if st.on: k.e("s_waitcnt vmcnt(0)")
    st(); st(real=True)
    st.dump(24, slot)
    k.lab(f"L_{name}_end")
    k.e("s_endpgm")
def waveid(k):
    k.e("v_lshrrev_b32 v1, 6, v0")
    k.e(f"v_readfirstlane_b32 s{sW}, v1")

def build(stamps=False, p1kw={}, p2kw={}, p3kw={}, p4kw={}):
    k1 = Kern("k1_kernel", vgpr=288); st = Stamps(k1, stamps, 47)
    head(k1, "k1_kernel", st); phase1(k1, "k1_kernel", st, **p1kw)
    k1.vm = []; k1.lg = []
    wof_load(k1, 8, 2, 4, 1, 3, 48)
    k1.wait(vm="wof")
    wof_store(k1, 24, 4, 1, 48)
    tail(k1, "k1_kernel", st, 0)
    k2 = Kern("k2_kernel", vgpr=416); st = Stamps(k2, stamps, 31)
    head(k2, "k2_kernel", st); waveid(k2)
    k2.e("s_waitcnt lgkmcnt(0)")
    k2.srd(24, PWS, WS_BYTES)
    warm_code(k2, "k2_kernel", 28, 2, 30, 47)
    phase3(k2, "k2_kernel", st, **p3kw)
    phase2(k2, "k2_kernel", st, **p2kw)
    tail(k2, "k2_kernel", st, 1)
    k3 = Kern("k3_kernel", vgpr=512); st = Stamps(k3, stamps, 38)
    head(k3, "k3_kernel", st); waveid(k3)
    k3.e("s_waitcnt lgkmcnt(0)")
    k3.srd(24, PWS, WS_BYTES)
    phase4(k3, "k3_kernel", st, **p4kw)
    tail(k3, "k3_kernel", st, 2)
    hdr = ["; LN + QKV + gate*up | down partials + attention | wo + reduce + epilogue",
           "; @launch kernel=k1_kernel grid=(256,1,1) block=(256,1,1) lds=147456",
           "; @launch kernel=k2_kernel grid=(256,1,1) block=(256,1,1) lds=147456",
           "; @launch kernel=k3_kernel grid=(256,1,1) block=(256,1,1) lds=0"]
    for k in (k1, k2, k3): print(k.name, "instrs", k.nins, "nops", k.nops)
    return module(hdr, [k1, k2, k3])
if __name__ == "__main__":
    p1kw = {"abl": ("noxt",)}
    open("m3_st.s", "w").write(build(stamps=True, p1kw=p1kw))
    open("m3.s", "w").write(build(stamps=False, p1kw=p1kw))
```
